```python
import torch

def _softmax(x, axis=-1):
    return torch.softmax(x, dim=axis)
def _gelu(x):
    return torch.nn.functional.gelu(x, approximate="tanh")
def _silu(x):
    return torch.nn.functional.silu(x)
def _sigmoid(x):
    return torch.sigmoid(x)
def _layernorm(x, axis=-1, eps=1e-5):
    m = x.mean(dim=axis, keepdim=True)
    v = x.var(dim=axis, keepdim=True, unbiased=False)
    return (x - m) / torch.sqrt(v + eps)
def _scatter_add(tgt, idx, src, axis=0):
    return tgt.clone().index_add_(axis, idx, src)
def _segment_sum(src, seg, n):
    out = torch.zeros((n,) + src.shape[1:], dtype=src.dtype)
    return out.index_add_(0, seg, src)
def _pad(x, pw):
    flat = tuple(v for pair in reversed(pw) for v in pair)
    return torch.nn.functional.pad(x, flat)

kernel_name = 'recurrent_scan__sliding_block_cached__geglu_ffn__prompt'

def setup_inputs():

    _w = (lambda a: (lambda t: t.to(torch.bfloat16) if t.is_floating_point() else t)(torch.as_tensor(a)))
    def _A_setup():
        B, Sq, D = 1, 2048, 576
        Hq, Hkv, Sk, Dh = 32, 16, 2048, 128
        assert Hq % Hkv == 0, (Hq, Hkv)
        return {
            "x": _w((lambda *s: torch.randn(*s, dtype=torch.bfloat16) * 0.05)(B, Sq, D)),
            "k_cache": _w((lambda *s: torch.randn(*s, dtype=torch.bfloat16) * 0.8)(B, Hkv, Sk, Dh)),
            "v_cache": _w((lambda *s: torch.randn(*s, dtype=torch.bfloat16) * 0.2)(B, Hkv, Sk, Dh)),
            "wq": _w((lambda *s: torch.randn(*s, dtype=torch.bfloat16) * 0.8)(D, Hq * Dh) * (D ** -0.5)),
            "wo": _w((lambda *s: torch.randn(*s, dtype=torch.bfloat16) * 0.2)(Hq * Dh, D) * ((Hq * Dh) ** -0.5)),
        }
    _A_in = _A_setup()

    def _B_setup():
        B, S, D, F = 1, 2048, 576, 4608
        return {
            "x": _w((lambda *s: torch.randn(*s, dtype=torch.bfloat16) * 0.05)(B, S, D)),
            "w_gate": _w((lambda *s: torch.randn(*s, dtype=torch.bfloat16) * 0.1)(D, F)),
            "w_up": _w((lambda *s: torch.randn(*s, dtype=torch.bfloat16) * 0.1)(D, F)),
            "w_down": _w((lambda *s: torch.randn(*s, dtype=torch.bfloat16) * 0.1)(F, D)),
        }
    _B_in = _B_setup()

    return {
        "A_x": _A_in["x"],
        "A_k_cache": _A_in["k_cache"],
        "A_v_cache": _A_in["v_cache"],
        "A_wq": _A_in["wq"],
        "A_wo": _A_in["wo"],
        "B_x": _B_in["x"],
        "B_w_gate": _B_in["w_gate"],
        "B_w_up": _B_in["w_up"],
        "B_w_down": _B_in["w_down"],
    }

def reference(A_x, A_k_cache, A_v_cache, A_wq, A_wo, B_x, B_w_gate, B_w_up, B_w_down):
    def _A_ref(x, k_cache, v_cache, wq, wo):
        B, Sq, D = x.shape
        Hq, Dh = 32, 128
        Hkv, Sk = k_cache.shape[1], k_cache.shape[2]
        W = min(4096, max(256, Sk // 4))
        rep = Hq // Hkv
        q = (lambda x, *d: x.permute(*d))((x @ wq).reshape(B, Sq, Hq, Dh), 0, 2, 1, 3)
        k = (lambda x, n, axis: torch.repeat_interleave(x, n, dim=axis))(k_cache[:, :, Sk - W:, :], rep, axis=1)
        v = (lambda x, n, axis: torch.repeat_interleave(x, n, dim=axis))(v_cache[:, :, Sk - W:, :], rep, axis=1)
        scores = torch.einsum("bhqd,bhkd->bhqk", q, k) * (Dh ** -0.5)
        p = _softmax(scores, axis=-1)
        o = torch.einsum("bhqk,bhkd->bhqd", p, v)
        return (lambda x, *d: x.permute(*d))(o, 0, 2, 1, 3).reshape(B, Sq, Hq * Dh) @ wo

    def _B_ref(x, w_gate, w_up, w_down):
        return (_gelu(x @ w_gate) * (x @ w_up)) @ w_down

    x = A_x
    xn = _layernorm(x, axis=-1)
    s = _A_ref(xn, A_k_cache, A_v_cache, A_wq, A_wo)
    g = _silu(_B_ref(xn, B_w_gate, B_w_up, B_w_down))
    return x + s * g
```

```python
from fw import *
WS_XN = 0x0
WS_H = 0x400000
WS_O = 0x1800000
WS_SLAB = 0x3000000
WS_SIZE = 268435456
KA = dict(x=0, k=8, v=16, wq=24, wo=32, bx=40, wg=48, wu=56, wd=64, out=72, dbg=80, ws=88)
SZ = dict(x=2048*576*2, k=16*2048*128*2, v=16*2048*128*2, wq=576*4096*2, wo=4096*576*2, wg=576*4608*2, wu=576*4608*2, wd=4608*576*2, out=2048*576*2, dbg=256, ws=WS_SIZE)

def L(txt, **kw):
    return [I(l, **kw) for l in txt.strip().split('\n') if l.strip()]

def srd(sreg, ptr_s, size):
    return L(f"""s_mov_b32 s{sreg}, s{ptr_s}
s_mov_b32 s{sreg+1}, s{ptr_s+1}
s_mov_b32 s{sreg+2}, {size}
s_mov_b32 s{sreg+3}, 0x20000""")

def header(name):
    return f""".globl {name}
.p2align 8
.type {name},@function
{name}:
"""
def descriptor(name, vgpr, accum, sgpr=96):
    return f""".amdhsa_kernel {name}
  .amdhsa_next_free_vgpr {vgpr}
  .amdhsa_next_free_sgpr {sgpr}
  .amdhsa_accum_offset {accum}
  .amdhsa_group_segment_fixed_size 0
  .amdhsa_kernarg_size 96
  .amdhsa_user_sgpr_count 2
  .amdhsa_user_sgpr_kernarg_segment_ptr 1
  .amdhsa_system_sgpr_workgroup_id_x 1
.end_amdhsa_kernel
"""
def f32bits(x):
    import struct
    return '0x%08x' % struct.unpack('<I', struct.pack('<f', x))[0]
```

```python
import re
from dataclasses import dataclass, field

REG_RE = re.compile(r'^(-|\|)?(abs\()?([vas])(\d+|\[(\d+):(\d+)\])\)?\|?$')

def regs_of(tok):
    tok = tok.strip()
    t = tok
    if t.startswith('-'): t = t[1:]
    if t.startswith('|') and t.endswith('|'): t = t[1:-1]
    if t in ('vcc', 'exec', 'm0', 'scc'):
        return [(t, 0)]
    if t in ('vcc_lo', 'vcc_hi'): return [('vcc', 0)]
    if t in ('exec_lo', 'exec_hi'): return [('exec', 0)]
    m = re.match(r'^([vas])(\d+)$', t)
    if m: return [(m.group(1), int(m.group(2)))]
    m = re.match(r'^([vas])\[(\d+):(\d+)\]$', t)
    if m: return [(m.group(1), i) for i in range(int(m.group(2)), int(m.group(3)) + 1)]
    return []

TRANS = ('v_exp_f32', 'v_rcp_f32', 'v_rsq_f32', 'v_log_f32', 'v_sqrt_f32')
SALU_NO_DST = ('s_cmp', 's_waitcnt', 's_barrier', 's_branch', 's_cbranch', 's_nop', 's_endpgm', 's_setprio', 's_sleep', 's_bitcmp')
SALU_SCC_W = ('s_add', 's_sub', 's_and', 's_or', 's_xor', 's_lshl', 's_lshr', 's_ashr', 's_cmp', 's_bfe', 's_min', 's_max', 's_bitcmp', 's_andn2', 's_not', 's_addc')

class I:
    __slots__ = ('text', 'kind', 'rd', 'wr', 'w', 'tag', 'mn', 'passes', 'vmid', 'meta')
    def __init__(self, text, tag=None, w=None, meta=None):
        self.text = text.strip()
        self.tag = tag
        self.meta = meta
        self.vmid = None
        self.passes = 0
        self._parse()
        if w is not None: self.w = w
    def _parse(self):
        t = self.text
        if t.endswith(':') or t.startswith('.') or t.startswith(';'):
            self.kind = 'label'; self.rd = []; self.wr = []; self.w = 0; self.mn = ''; return
        parts = t.split(None, 1)
        mn = parts[0]; self.mn = mn
        rest = parts[1] if len(parts) > 1 else ''
        rest = rest.split(';')[0]
        ops = []; cur = ''; d = 0
        for ch in rest:
            if ch == '[': d += 1
            if ch == ']': d -= 1
            if ch == ',' and d == 0:
                ops.append(cur.strip()); cur = ''
            else: cur += ch
        if cur.strip(): ops.append(cur.strip())
        mods = ''
        if ops:
            sp = ops[-1].split(None, 1)
            ops[-1] = sp[0]
            if len(sp) > 1: mods = sp[1]
        R = regs_of
        rd = []; wr = []; self.w = 1
        if mn.startswith('v_mfma'):
            self.kind = 'mfma'
            self.passes = 8 if '32x32' in mn else 4
            wr = R(ops[0]); rd = R(ops[1]) + R(ops[2]) + R(ops[3])
            self.meta = dict(self.meta or {}, A=R(ops[1]), B=R(ops[2]), C=R(ops[3]), D=R(ops[0]))
            self.w = 2
        elif mn.startswith('ds_read') or mn.startswith('ds_bpermute'):
            self.kind = 'ds_read'; wr = R(ops[0]); rd = sum((R(o) for o in ops[1:]), [])
        elif mn.startswith('ds_write'):
            self.kind = 'ds_write'; rd = sum((R(o) for o in ops), [])
        elif mn.startswith('buffer_load'):
            if ' lds' in (' ' + mods + ' ') or mods.endswith('lds'):
                self.kind = 'dma'; rd = sum((R(o) for o in ops), []) + [('m0', 0)]
            else:
                self.kind = 'vm_load'; wr = R(ops[0]); rd = sum((R(o) for o in ops[1:]), [])
        elif mn.startswith('buffer_store'):
            self.kind = 'vm_store'; rd = sum((R(o) for o in ops), [])
            self.meta = dict(self.meta or {}, data=R(ops[0]))
        elif mn.startswith('buffer_atomic') or mn.startswith('global_atomic'):
            self.kind = 'vm_atomic'; rd = sum((R(o) for o in ops), [])
            if 'sc0' in mods: wr = R(ops[0])
        elif mn.startswith('global_load'):
            self.kind = 'vm_load'; wr = R(ops[0]); rd = sum((R(o) for o in ops[1:]), [])
        elif mn.startswith('global_store'):
            self.kind = 'vm_store'; rd = sum((R(o) for o in ops), [])
            self.meta = dict(self.meta or {}, data=R(ops[1]))
        elif mn.startswith('buffer_inv') or mn.startswith('buffer_wbl2'):
            self.kind = 'vm_misc'
        elif mn.startswith('s_load') or mn.startswith('s_memtime') or mn.startswith('s_memrealtime'):
            self.kind = 'smem'; wr = R(ops[0]); rd = R(ops[1]) if len(ops) > 1 else []
        elif mn == 's_waitcnt':
            self.kind = 'wait'
        elif mn == 's_barrier':
            self.kind = 'barrier'
        elif mn == 's_nop':
            self.kind = 'nop'
        elif mn.startswith('s_branch') or mn.startswith('s_cbranch') or mn == 's_endpgm':
            self.kind = 'branch'
            if 'scc' in mn: rd = [('scc', 0)]
            elif 'vcc' in mn: rd = [('vcc', 0)]
            elif 'exec' in mn: rd = [('exec', 0)]
        elif mn.startswith('s_'):
            self.kind = 'salu'
            if any(mn.startswith(p) for p in SALU_NO_DST):
                rd = sum((R(o) for o in ops), [])
            else:
                wr = R(ops[0]); rd = sum((R(o) for o in ops[1:]), [])
            if mn.startswith('s_cselect') or mn.startswith('s_addc') or mn.startswith('s_cmov'): rd += [('scc', 0)]
            if mn.endswith('saveexec_b64'): rd += [('exec', 0)]; wr += [('exec', 0)]
            if any(mn.startswith(p) for p in SALU_SCC_W) or mn.endswith('saveexec_b64'): wr += [('scc', 0)]
        elif mn.startswith('v_'):
            base = mn.replace('_e32', '').replace('_e64', '').replace('_dpp', '').replace('_sdwa', '')
            self.kind = 'trans' if base in TRANS else 'valu'
            if self.kind == 'trans': self.w = 2
            if base.startswith('v_cmpx'):
                wr = R(ops[0]) + [('exec', 0)]; rd = sum((R(o) for o in ops[1:]), [])
            elif base.startswith('v_permlane') and 'swap' in base:
                wr = R(ops[0]) + R(ops[1]); rd = list(wr)
            elif base in ('v_fmac_f32', 'v_dot2c_f32_bf16', 'v_pk_fmac_f16', 'v_writelane_b32'):
                wr = R(ops[0]); rd = R(ops[0]) + sum((R(o) for o in ops[1:]), [])
            elif base == 'v_cndmask_b32':
                wr = R(ops[0]); rd = sum((R(o) for o in ops[1:]), [])
                if len(ops) == 3: rd += [('vcc', 0)]
            elif base in ('v_add_co_u32', 'v_sub_co_u32', 'v_addc_co_u32', 'v_mad_u64_u32'):
                wr = R(ops[0]) + R(ops[1]); rd = sum((R(o) for o in ops[2:]), [])
            else:
                wr = R(ops[0]); rd = sum((R(o) for o in ops[1:]), [])
            if 'dpp' in mn or 'row_' in mods or 'quad_perm' in mods:
                self.meta = dict(self.meta or {}, dpp=True)
                if 'bound_ctrl' not in mods: rd = rd + wr
        else:
            raise ValueError('cannot parse: ' + t)
        self.rd = rd; self.wr = wr
    def __repr__(self): return self.text

class WaitDS:
    kind = 'waitds'; w = 1
    def __init__(self, items): self.items = items
class WaitVM:
    kind = 'waitvm'; w = 1
    def __init__(self, items, extra=0): self.items = items
class WaitBoth:
    kind = 'waitboth'; w = 1
    def __init__(self, ds, vm): self.ds = ds; self.vm = vm

def is_vm(i): return i.kind in ('vm_load', 'vm_store', 'dma', 'vm_atomic')
def is_ds(i): return i.kind in ('ds_read', 'ds_write')

def resolve_waits(seq):
    out = []
    vm_pos = {}; ds_pos = {}
    nvm = 0; nds = 0
    vm_done = 0; ds_done = 0
    for x in seq:
        if isinstance(x, (WaitDS, WaitVM, WaitBoth)):
            parts = []
            dsl = x.items if isinstance(x, WaitDS) else (x.ds if isinstance(x, WaitBoth) else [])
            vml = x.items if isinstance(x, WaitVM) else (x.vm if isinstance(x, WaitBoth) else [])
            if vml:
                need = max(vm_pos[id(i)] for i in vml) + 1
                if need > vm_done:
                    n = min(nvm - need, 63)
                    parts.append(f'vmcnt({n})'); vm_done = max(vm_done, nvm - n)
            if dsl:
                need = max(ds_pos[id(i)] for i in dsl) + 1
                if need > ds_done:
                    n = min(nds - need, 15)
                    parts.append(f'lgkmcnt({n})'); ds_done = max(ds_done, nds - n)
            if parts: out.append(I('s_waitcnt ' + ' '.join(parts)))
            continue
        if is_vm(x): vm_pos[id(x)] = nvm; nvm += 1
        if is_ds(x): ds_pos[id(x)] = nds; nds += 1
        if x.kind == 'wait':
            m = re.search(r'vmcnt\((\d+)\)', x.text)
            if m: vm_done = max(vm_done, nvm - int(m.group(1)))
            m = re.search(r'lgkmcnt\((\d+)\)', x.text)
            if m: ds_done = max(ds_done, nds - int(m.group(1)))
        out.append(x)
    return out

class HazardError(Exception): pass

def check(seq, fix=True, slabs=None, verbose=False, init_pending=None):
    out = []
    last = {}
    state = 0
    lastw = {}
    mfmaC = {}
    storeW = {}
    pend_vm = {}
    pend_ds = {}
    pend_sm = set()
    nvm = 0; nds = 0; vm_done = 0; ds_done = 0
    dma_last = {}
    dma_ok = {}
    rd_last = {}
    slab_free = {}
    barrier_vm_done = -1
    nnop = 0
    live_region = {}
    def need(n, pos):
        return n - (state - pos - 1)
    for x in seq:
        if x.kind == 'label':
            out.append(x); continue
        req = 0
        why = ''
        def upd(r, w):
            nonlocal req, why
            if r > req: req = r; why = w
        isvalu = x.kind in ('valu', 'trans')
        for r in x.rd:
            if r in lastw:
                pos, w = lastw[r]
                d = state - pos - 1
                if w.kind == 'mfma':
                    p = w.passes
                    if x.kind == 'mfma':
                        if r in x.meta['C'] and r not in x.meta['A'] and r not in x.meta['B']:
                            if x.meta['C'] == w.meta['D'] and x.passes == p: n = 0 if p >= 4 else 2
                            else: n = {4: 6, 8: 10}[p]
                        else: n = {4: 8, 8: 12}[p]
                    else:
                        n = {4: 8, 8: 12}[p]
                    upd(n - d, f'mfma->{x.kind} RAW {r}')
                elif w.kind in ('valu', 'trans'):
                    if x.kind == 'mfma': upd(2 - d, f'valu->mfma {r}')
                    if w.kind == 'trans' and isvalu and x.kind != 'trans': upd(1 - d, f'trans->valu {r}')
                    if w.kind == 'trans' and x.kind == 'trans': upd(1 - d, f'trans->trans {r}')
                    if r[0] == 'v' and x.mn.startswith(('v_readlane', 'v_readfirstlane')): upd(1 - d, 'valu->readlane')
                    if r[0] == 'v' and x.mn.startswith('v_permlane'): upd(2 - d, 'valu->permlane')
                    if r[0] == 'v' and x.meta and x.meta.get('dpp'): upd(2 - d, 'valu->dpp')
                    if r[0] in ('s', 'vcc'):
                        if isvalu: upd(2 - d, 'valu sgpr->valu')
                        if x.kind in ('vm_load', 'vm_store', 'dma', 'vm_atomic'): upd(5 - d, 'valu sgpr->vmem')
                        if x.kind in ('salu', 'branch'): upd(4 - d, 'valu sgpr->salu (pad)')
                    if r[0] == 'exec':
                        if x.meta and x.meta.get('dpp'): upd(5 - d, 'exec->dpp')
                elif w.kind == 'salu':
                    if r == ('m0', 0) and x.kind == 'dma': upd(1 - d, 'm0->dma')
        for r in x.wr:
            if r in lastw:
                pos, w = lastw[r]; d = state - pos - 1
                if w.kind == 'mfma':
                    p = w.passes
                    if x.kind == 'mfma':
                        if r not in x.meta['C']: upd({4: 6, 8: 10}[p] - d, 'mfma WAW')
                    else:
                        upd({4: 8, 8: 12}[p] - d, f'mfma->{x.kind} WAW {r}')
            if isvalu and r in mfmaC:
                pos, p = mfmaC[r]; d = state - pos - 1
                upd({4: 3, 8: 7}[p] - d, 'mfma C WAR')
            if r in storeW:
                pos = storeW[r]; d = state - pos - 1
                upd((2 if isvalu else 1) - d, 'store data WAR')
        for r in list(x.rd) + list(x.wr):
            if r in pend_vm and pend_vm[r] >= vm_done:
                raise HazardError(f'reg {r} used by "{x.text}" while vm load pending')
            if r in pend_ds and pend_ds[r] >= ds_done:
                raise HazardError(f'reg {r} used by "{x.text}" while ds read pending')
            if r in pend_sm:
                raise HazardError(f'reg {r} used by "{x.text}" while smem pending')
        if req > 0:
            if not fix: raise HazardError(f'{why}: need {req} more states before "{x.text}"')
            k = req
            while k > 0:
                n = min(k, 16)
                out.append(I(f's_nop {n-1}')); state += n; k -= n; nnop += 1
            if verbose: print(f'  nop {req} ({why}) before {x.text}')
        if slabs is not None and x.tag:
            kind, sid = x.tag
            sl = slabs[sid]
            if kind == 'rd':
                if not dma_ok.get(sid, False):
                    raise HazardError(f'read of slab {sid} before its DMA is synced: {x.text}')
                rd_last[sid] = nds
                slab_free[sid] = False
            elif kind == 'dma':
                lo, hi = sl['addr'], sl['addr'] + sl['size']
                for oid, (olo, ohi) in list(live_region.items()):
                    if oid != sid and olo < hi and lo < ohi:
                        if not slab_free.get(oid, False):
                            raise HazardError(f'DMA into slab {sid} overlaps un-freed slab {oid}: {x.text}')
                        del live_region[oid]
                live_region[sid] = (lo, hi)
                dma_last[sid] = nvm
                dma_ok[sid] = False
                slab_free[sid] = False
        if x.kind == 'wait':
            m = re.search(r'vmcnt\((\d+)\)', x.text)
            if m: vm_done = max(vm_done, nvm - int(m.group(1)))
            m = re.search(r'lgkmcnt\((\d+)\)', x.text)
            if m:
                n = int(m.group(1))
                ds_done = max(ds_done, nds - n)
                if n == 0: pend_sm.clear()
        if x.kind == 'barrier' and slabs is not None:
            for sid, v in dma_last.items():
                if v < vm_done: dma_ok[sid] = True
            for sid, v in rd_last.items():
                if v < ds_done and sid in live_region and slabs[sid].get('nreads') is not None:
                    if slabs[sid]['_seen'] >= slabs[sid]['nreads']: slab_free[sid] = True
        if slabs is not None and x.tag and x.tag[0] == 'rd':
            slabs[x.tag[1]]['_seen'] = slabs[x.tag[1]].get('_seen', 0) + 1
        if x.kind == 'vm_load':
            for r in x.wr: pend_vm[r] = nvm
        if x.kind == 'vm_atomic':
            for r in x.wr: pend_vm[r] = nvm
        if x.kind == 'ds_read':
            for r in x.wr: pend_ds[r] = nds
        if x.kind == 'smem':
            for r in x.wr: pend_sm.add(r)
        if is_vm(x): nvm += 1
        if is_ds(x): nds += 1
        for r in x.wr:
            lastw[r] = (state, x)
            if x.kind not in ('vm_load', 'vm_atomic'): pend_vm.pop(r, None)
            if x.kind != 'ds_read': pend_ds.pop(r, None)
            storeW.pop(r, None)
        if x.kind == 'mfma':
            for r in x.meta['C']: mfmaC[r] = (state, x.passes)
        if x.kind == 'vm_store' and ('x4' in x.mn or 'x3' in x.mn):
            for r in x.meta['data']: storeW[r] = state
        out.append(x)
        if x.kind == 'nop': state += int(x.text.split()[1]) + 1
        else: state += 1
    return out, nnop

class Timeline:
    def __init__(self):
        self.mf = []
        self.gap = [[]]
        self.load = [0.0]
    def add_mfma(self, ins):
        self.mf.append(ins); self.gap.append([]); self.load.append(0.0)
        return len(self.mf) - 1
    def put(self, g, ins, front=False):
        if front: self.gap[g].insert(0, ins)
        else: self.gap[g].append(ins)
        self.load[g] += getattr(ins, 'w', 1)
    def spread(self, instrs, g0, g1, cap=2.0, groups=False):
        g1 = min(g1, len(self.gap))
        assert g0 < g1, (g0, g1)
        ws = [sum(getattr(j, 'w', 1) for j in i) if isinstance(i, list) else getattr(i, 'w', 1) for i in instrs]
        tot = sum(ws)
        free = [max(0.0, cap - self.load[g]) for g in range(g0, g1)]
        F = sum(free)
        if F < tot:
            ex = (tot - F) / (g1 - g0)
            free = [f + ex for f in free]; F = tot
        cum = []; c = 0.0
        for f in free: c += f; cum.append(c)
        scale = F / tot if tot else 1
        pos = 0.0; gi = 0
        res = []
        for ins, w in zip(instrs, ws):
            target = (pos + 0.5*w) * scale
            while gi < len(cum) - 1 and cum[gi] < target: gi += 1
            pos += w
            if isinstance(ins, list):
                for j in ins: self.put(g0 + gi, j)
            else: self.put(g0 + gi, ins)
            res.append(g0 + gi)
        return res
    def flatten(self):
        out = []
        for i, m in enumerate(self.mf):
            out += self.gap[i]; out.append(m)
        out += self.gap[len(self.mf)]
        return out

def emit(seq):
    return '\n'.join(x.text for x in seq) + '\n'
```

```python
from common import *
NAME = 'ln_kernel'
def gen():
    s = []
    s += L(f"""s_cmp_ge_u32 s2, 128
s_cbranch_scc1 {NAME}_end
s_load_dwordx2 s[4:5], s[0:1], {KA['x']}
s_load_dwordx2 s[6:7], s[0:1], {KA['ws']}
v_lshrrev_b32 v1, 6, v0
v_and_b32 v0, 63, v0
v_readfirstlane_b32 s3, v1
s_waitcnt lgkmcnt(0)""")
    s += srd(8, 4, SZ['x']) + srd(12, 6, SZ['ws'])
    s += L(f"""s_lshl_b32 s16, s2, 4
s_lshl_b32 s17, s3, 2
s_add_u32 s16, s16, s17
v_lshrrev_b32 v2, 4, v0
v_add_u32 v3, s16, v2
s_movk_i32 s18, 1152
v_mul_lo_u32 v3, v3, s18
v_and_b32 v4, 15, v0
v_lshlrev_b32 v5, 3, v4
v_add_u32 v3, v3, v5""")
    loads = []
    for i in range(9):
        x = I(f'buffer_load_dwordx2 v[{16+2*i}:{17+2*i}], v3, s[8:11], 0 offen offset:{128*i}'); loads.append(x); s.append(x)
    s += L(f"""s_lshr_b32 s19, s2, 2
s_mul_i32 s19, s19, {18*4096}
s_and_b32 s20, s2, 3
s_lshl_b32 s20, s20, 10
s_add_u32 s19, s19, s20
v_lshrrev_b32 v6, 3, v4
v_lshlrev_b32 v6, 12, v6
v_and_b32 v7, 3, v4
v_lshlrev_b32 v7, 8, v7
v_add_u32 v6, v6, v7
v_add_u32 v7, s17, v2
v_lshlrev_b32 v7, 4, v7
v_add_u32 v6, v6, v7
v_bfe_u32 v7, v4, 2, 1
v_lshlrev_b32 v7, 3, v7
v_add_u32 v6, v6, v7""")
    s.append(WaitVM(loads))
    for i in range(9):
        for d in range(2):
            src = 16 + 2*i + d
            s += L(f"""v_lshlrev_b32 v{40+4*i+2*d}, 16, v{src}
v_and_b32 v{41+4*i+2*d}, 0xffff0000, v{src}""")
    s += L("v_add_f32 v8, v40, v41")
    for k in range(2, 36): s += L(f"v_add_f32 v8, v8, v{40+k}")
    def rowsum(r):
        o = []
        for n in (8, 4, 2, 1):
            o += L(f"""s_nop 1
v_add_f32_dpp v{r}, v{r}, v{r} row_ror:{n} row_mask:0xf bank_mask:0xf""")
        return o
    s += rowsum(8)
    s += L(f"v_mul_f32 v8, {f32bits(1.0/576)}, v8")
    for k in range(36): s += L(f"v_sub_f32 v{40+k}, v{40+k}, v8")
    s += L("v_mul_f32 v9, v40, v40")
    for k in range(1, 36): s += L(f"v_fmac_f32 v9, v{40+k}, v{40+k}")
    s += rowsum(9)
    s += L(f"""v_mov_b32 v10, {f32bits(1e-5)}
v_fmac_f32 v10, {f32bits(1.0/576)}, v9
v_rsq_f32 v10, v10
s_nop 0""")
    for k in range(36): s += L(f"v_mul_f32 v{40+k}, v{40+k}, v10")
    for i in range(9):
        for d in range(2):
            s += L(f"v_cvt_pk_bf16_f32 v{16+2*i+d}, v{40+4*i+2*d}, v{41+4*i+2*d}")
    for i in range(9):
        s += L(f"""s_add_u32 s21, s19, {2*i*4096}
buffer_store_dwordx2 v[{16+2*i}:{17+2*i}], v6, s[12:15], s21 offen""")
    s += L(f"""s_waitcnt vmcnt(0)
{NAME}_end:
s_endpgm""")
    r = resolve_waits(s)
    r, n = check(r)
    return header(NAME) + emit(r), descriptor(NAME, 80, 80, 32)
if __name__ == '__main__':
    print(gen()[0])
```

```python
from common import *
import math
NAME = 'p1_kernel'
S_WS = 8; S_GU = 12; S_WQ = 16; S_K = 20; S_V = 24
S_W = 28; S_R = 29; S_C = 30; S_LDSW = 31
S_GUO = 32; S_XO = 33; S_QO = 34; S_KVO = 35; S_XN = 36; S_HO = 37; S_OO = 38; S_HXO = 39
S_T0 = 40; S_T1 = 41; S_T2 = 42; S_T3 = 43
S_C1 = 44; S_QS = 45; S_LDSW2 = 46
V_GUD = 1; V_XD = 2; V_QD = 3; V_GU0 = 4; V_GU1 = 5; V_X = 6; V_L16 = 9; V_KV0 = 10; V_KV1 = 11; V_C2 = 12; V_Q0 = 13; V_Q1 = 14
V_K = [4, 5, 6, 7]
ABUF = 16; NBUF = 4
ACC = [32, 96]
V_TMP = 160
V_HP = 168
V_QP = [192, 208, 224, 240]
V_S = [96, 128]
V_P = [160, 176]
V_V = list(range(32, 40))
A_O = 0; A_L = 128; A_ONES = 144
C1 = -2.0*math.sqrt(2.0/math.pi)*math.log2(math.e)
C2 = C1*0.044715
QSCALE = math.log2(math.e)/math.sqrt(128.0)

def xn(s, tt):
    if s < 16: return f'a[{16*s+4*tt}:{16*s+4*tt+3}]'
    b = 224 + 16*(s-16) + 4*tt
    return f'v[{b}:{b+3}]'

class Op:
    def __init__(self, reads, mfmas, slab, sync=False, addr=None):
        self.reads = reads
        self.mfmas = mfmas
        self.slabs = slab if isinstance(slab, list) else [slab]
        self.sync = sync
        self.addr = addr
        self.pre = []

def setup():
    s = L(f"""s_cmp_ge_u32 s2, 256
s_cbranch_scc1 {NAME}_end
s_load_dwordx4 s[48:51], s[0:1], {KA['k']}
s_load_dwordx2 s[52:53], s[0:1], {KA['wq']}
s_load_dwordx4 s[56:59], s[0:1], {KA['wg']}
s_load_dwordx2 s[60:61], s[0:1], {KA['ws']}
v_lshrrev_b32 v1, 6, v0
v_and_b32 v0, 63, v0
v_readfirstlane_b32 s{S_W}, v1
s_and_b32 s{S_T0}, s2, 7
s_lshr_b32 s{S_T1}, s2, 3
s_lshr_b32 s{S_R}, s{S_T1}, 2
s_and_b32 s{S_T1}, s{S_T1}, 3
s_lshl_b32 s{S_C}, s{S_T0}, 2
s_add_u32 s{S_C}, s{S_C}, s{S_T1}
s_waitcnt lgkmcnt(0)""")
    s += srd(S_WS, 60, SZ['ws']) + srd(S_WQ, 52, SZ['wq']) + srd(S_K, 48, SZ['k']) + srd(S_V, 50, SZ['v'])
    s += L(f"""s_cmp_ge_u32 s{S_W}, 2
s_cselect_b32 s{S_GU}, s58, s56
s_cselect_b32 s{S_GU+1}, s59, s57
s_mov_b32 s{S_GU+2}, {SZ['wg']}
s_mov_b32 s{S_GU+3}, 0x20000
s_lshl_b32 s{S_LDSW}, s{S_W}, 10
s_lshl_b32 s{S_LDSW2}, s{S_W}, 11
s_and_b32 s{S_T0}, s{S_W}, 1
s_mul_i32 s{S_GUO}, s{S_T0}, {16*9216}
s_lshl_b32 s{S_T1}, s{S_C}, 8
s_add_u32 s{S_GUO}, s{S_GUO}, s{S_T1}
s_mul_i32 s{S_XO}, s{S_T0}, {32*9216}
s_lshl_b32 s{S_T2}, s{S_C}, 5
s_add_u32 s{S_XO}, s{S_XO}, s{S_T2}
s_add_u32 s{S_XO}, s{S_XO}, 8192
s_mul_i32 s{S_QO}, s{S_W}, {8*8192}
s_add_u32 s{S_QO}, s{S_QO}, s{S_T1}
s_lshr_b32 s{S_T2}, s{S_C}, 1
s_lshl_b32 s{S_KVO}, s{S_T2}, 19
s_add_u32 s{S_KVO}, s{S_KVO}, s{S_LDSW2}
s_add_u32 s{S_KVO}, s{S_KVO}, {1536*256}
s_lshl_b32 s{S_T3}, s{S_R}, 2
s_add_u32 s{S_T3}, s{S_T3}, s{S_W}
s_mul_i32 s{S_XN}, s{S_T3}, {18*4096}
s_add_u32 s{S_XN}, s{S_XN}, {WS_XN}
s_mul_i32 s{S_HO}, s{S_T3}, {144*4096}
s_add_u32 s{S_HO}, s{S_HO}, {WS_H}
s_lshl_b32 s{S_T0}, s{S_T2}, 12
s_add_u32 s{S_HXO}, s{S_HO}, s{S_T0}
s_add_u32 s{S_HXO}, s{S_HXO}, {128*4096}
s_and_b32 s{S_T0}, s{S_C}, 1
s_lshl_b32 s{S_T0}, s{S_T0}, 3
s_add_u32 s{S_HXO}, s{S_HXO}, s{S_T0}
s_lshl_b32 s{S_T0}, s{S_C}, 14
s_add_u32 s{S_HO}, s{S_HO}, s{S_T0}
s_mul_i32 s{S_OO}, s{S_T3}, {128*4096}
s_add_u32 s{S_OO}, s{S_OO}, s{S_T0}
s_add_u32 s{S_OO}, s{S_OO}, {WS_O}
s_mov_b32 s{S_C1}, {f32bits(C1)}
s_mov_b32 s{S_QS}, {f32bits(QSCALE)}
v_mov_b32 v{V_C2}, {f32bits(C2)}
v_lshlrev_b32 v{V_L16}, 4, v0""")
    s += L(f"""v_lshrrev_b32 v20, 4, v0
v_and_b32 v21, 15, v0
v_lshrrev_b32 v22, 2, v21
v_and_b32 v23, 3, v21
v_and_b32 v24, 1, v20
s_movk_i32 s{S_T0}, 9216
v_lshrrev_b32 v25, 2, v0
v_mul_lo_u32 v25, v25, s{S_T0}
v_and_b32 v26, 3, v0
v_lshlrev_b32 v27, 1, v24
v_xor_b32 v26, v26, v27
v_lshl_add_u32 v{V_GUD}, v26, 4, v25
v_lshrrev_b32 v25, 1, v0
v_mul_lo_u32 v25, v25, s{S_T0}
v_and_b32 v26, 1, v0
v_lshl_add_u32 v{V_XD}, v26, 4, v25
v_lshrrev_b32 v25, 3, v0
v_lshlrev_b32 v25, 13, v25
v_and_b32 v26, 7, v0
v_lshlrev_b32 v27, 2, v24
v_xor_b32 v26, v26, v27
v_lshl_add_u32 v{V_QD}, v26, 4, v25
v_lshlrev_b32 v25, 1, v20
v_xor_b32 v26, v21, v25
v_lshlrev_b32 v26, 4, v26
v_lshl_add_u32 v{V_KV0}, v20, 8, v26
v_xor_b32 v{V_KV1}, 128, v{V_KV0}
v_lshl_add_u32 v25, v20, 2, v22
v_lshrrev_b32 v26, 1, v23
v_lshlrev_b32 v27, 1, v24
v_xor_b32 v26, v26, v27
v_lshlrev_b32 v26, 4, v26
v_and_b32 v27, 1, v23
v_lshl_add_u32 v26, v27, 3, v26
v_lshl_add_u32 v{V_GU0}, v25, 6, v26
v_xor_b32 v{V_GU1}, 32, v{V_GU0}
v_lshlrev_b32 v26, 3, v23
v_lshl_add_u32 v{V_X}, v25, 5, v26
v_lshrrev_b32 v26, 1, v22
v_lshlrev_b32 v26, 2, v26
v_xor_b32 v26, v26, v23
v_lshlrev_b32 v26, 4, v26
v_lshl_add_u32 v{V_Q0}, v25, 7, v26
v_xor_b32 v{V_Q1}, 64, v{V_Q0}""")
    return s

def kaddr_setup():
    s = L(f"""v_and_b32 v172, 15, v0
v_lshrrev_b32 v173, 4, v0
v_and_b32 v174, 7, v172
v_lshlrev_b32 v174, 1, v174
v_xor_b32 v174, v174, v173
v_lshlrev_b32 v174, 4, v174
v_lshl_add_u32 v{V_K[0]}, v172, 8, v174
v_xor_b32 v{V_K[1]}, 64, v{V_K[0]}
v_xor_b32 v{V_K[2]}, 128, v{V_K[0]}
v_xor_b32 v{V_K[3]}, 192, v{V_K[0]}""")
    return s
def vaddr_setup():
    s = L(f"""v_lshrrev_b32 v40, 4, v0
v_and_b32 v41, 15, v0
v_lshrrev_b32 v42, 2, v41
v_and_b32 v43, 3, v41
v_lshl_add_u32 v44, v40, 2, v42
v_and_b32 v45, 7, v44
v_lshlrev_b32 v45, 1, v45
v_lshrrev_b32 v41, 1, v43
v_xor_b32 v45, v45, v41
v_lshlrev_b32 v45, 4, v45
v_and_b32 v43, 1, v43
v_lshl_add_u32 v45, v43, 3, v45
v_lshl_add_u32 v45, v44, 8, v45
v_add_u32 v{V_V[0]}, 0x10000, v45""")
    for dt in range(1, 8): s += L(f"v_xor_b32 v{V_V[dt]}, {32*dt}, v{V_V[0]}")
    s += L(f"v_mov_b32 v46, 0x3f803f80")
    for i in range(4): s += L(f"v_accvgpr_write_b32 a{A_ONES+i}, v46")
    return s

def gelu_tile(g, u, hp0, tmp):
    t = [tmp+i for i in range(4)]
    s = []
    for i in range(4): s.append(I(f'v_mul_f32 v{t[i]}, v{g+i}, v{g+i}'))
    for i in range(4): s.append(I(f'v_fma_f32 v{t[i]}, v{t[i]}, v{V_C2}, s{S_C1}'))
    for i in range(4): s.append(I(f'v_mul_f32 v{t[i]}, v{g+i}, v{t[i]}'))
    for i in range(4): s.append(I(f'v_exp_f32 v{t[i]}, v{t[i]}'))
    for i in range(4): s.append(I(f'v_mul_f32 v{u+i}, v{g+i}, v{u+i}'))
    for i in range(4): s.append(I(f'v_add_f32 v{t[i]}, 1.0, v{t[i]}'))
    for i in range(4): s.append(I(f'v_rcp_f32 v{t[i]}, v{t[i]}'))
    for i in range(4): s.append(I(f'v_mul_f32 v{u+i}, v{u+i}, v{t[i]}'))
    s.append(I(f'v_cvt_pk_bf16_f32 v{hp0}, v{u}, v{u+1}'))
    s.append(I(f'v_cvt_pk_bf16_f32 v{hp0+1}, v{u+2}, v{u+3}'))
    return s

def gen(dbg=None):
    tl = Timeline()
    ops = []
    slabs = {}
    dmas = []
    def slab(sid, addr, size, dma):
        slabs[sid] = dict(addr=addr, size=size, dma=dma, nreads=0)
        dmas.append(sid)
    RHO = 4
    slot_i = [0]
    def next_slot_addr():
        a = 24576*((slot_i[0] + RHO) % 6); slot_i[0] += 1; return a
    def dma_grp(m0txt, sofftxt, load):
        return [I(m0txt), I(sofftxt), load]
    group_ops = {}
    tr = 'ds_read_b64_tr_b16'
    def gu_group(j, aset):
        first = len(ops)
        for sl in range(3):
            addr = next_slot_addr(); sid = f'GU{j}_{sl}'
            d = []
            for i in range(6):
                s = 6*sl + i
                d.append(dma_grp(f's_add_u32 m0, s{S_LDSW}, {addr + 4096*i}', f's_add_u32 s{S_T0}, s{S_GUO}, {s*32*9216 + 64*j}',
                                 I(f'buffer_load_dwordx4 v{V_GUD}, s[{S_GU}:{S_GU+3}], s{S_T0} offen lds', tag=('dma', sid))))
            slab(sid, addr, 24576, d)
            for i in range(6):
                s = 6*sl + i
                for m in range(2):
                    for T in range(2):
                        areg = V_GU0 + T
                        off = 4096*i + 2048*m
                        acc = ACC[aset] + (2*m+T)*16
                        mf = []
                        for tt in range(4):
                            c = '0' if s == 0 else f'v[{acc+4*tt}:{acc+4*tt+3}]'
                            mf.append(lambda A, acc=acc, tt=tt, s=s, c=c: f'v_mfma_f32_16x16x32_bf16 v[{acc+4*tt}:{acc+4*tt+3}], {A}, {xn(s,tt)}, {c}')
                        o = Op([(tr, areg, off), (tr, areg, off+1024)], mf, sid, sync=(i == 0 and m == 0 and T == 0), addr={V_GU0: addr, V_GU1: addr})
                        o.kstep = s
                        ops.append(o)
        group_ops[f'GU{j}'] = (first, len(ops))
    def x_group(aset):
        first = len(ops)
        for sl, (k0, nk) in enumerate(((0, 10), (10, 8))):
            addr = next_slot_addr(); sid = f'X_{sl}'
            d = []
            for i in range(nk//2):
                pr = k0//2 + i
                d.append(dma_grp(f's_add_u32 m0, s{S_LDSW}, {addr + 4096*i}', f's_add_u32 s{S_T0}, s{S_XO}, {pr*64*9216}',
                                 I(f'buffer_load_dwordx4 v{V_XD}, s[{S_GU}:{S_GU+3}], s{S_T0} offen lds', tag=('dma', sid))))
            slab(sid, addr, 4096*(nk//2), d)
            for i in range(nk):
                s = k0 + i
                for m in range(2):
                    off = 4096*(i//2) + (2*m + (i & 1))*1024
                    acc = ACC[aset] + m*16
                    mf = []
                    for tt in range(4):
                        c = '0' if s == 0 else f'v[{acc+4*tt}:{acc+4*tt+3}]'
                        mf.append(lambda A, acc=acc, tt=tt, s=s, c=c: f'v_mfma_f32_16x16x32_bf16 v[{acc+4*tt}:{acc+4*tt+3}], {A}, {xn(s,tt)}, {c}')
                    ops.append(Op([(tr, V_X, off), (tr, V_X, off+512)], mf, sid, sync=(i == 0 and m == 0), addr={V_X: addr}))
        group_ops['X'] = (first, len(ops))
    def q_group(u, aset):
        first = len(ops)
        for sl in range(3):
            addr = next_slot_addr(); sid = f'Q{u}_{sl}'
            d = []
            for i in range(6):
                s = 6*sl + i
                d.append(dma_grp(f's_add_u32 m0, s{S_LDSW}, {addr + 4096*i}', f's_add_u32 s{S_T0}, s{S_QO}, {s*32*8192 + 128*u}',
                                 I(f'buffer_load_dwordx4 v{V_QD}, s[{S_WQ}:{S_WQ+3}], s{S_T0} offen lds', tag=('dma', sid))))
            slab(sid, addr, 24576, d)
            for i in range(6):
                s = 6*sl + i
                for e in range(2):
                    for T in range(2):
                        areg = V_Q0 + e
                        off = 4096*i + 8*T
                        acc = ACC[aset] + (2*e+T)*16
                        mf = []
                        for tt in range(4):
                            c = '0' if s == 0 else f'v[{acc+4*tt}:{acc+4*tt+3}]'
                            mf.append(lambda A, acc=acc, tt=tt, s=s, c=c: f'v_mfma_f32_16x16x32_bf16 v[{acc+4*tt}:{acc+4*tt+3}], {A}, {xn(s,tt)}, {c}')
                        ops.append(Op([(tr, areg, off), (tr, areg, off+2048)], mf, sid, sync=(i == 0 and e == 0 and T == 0), addr={V_Q0: addr, V_Q1: addr}))
        group_ops[f'Q{u}'] = (first, len(ops))
    gu_group(0, 0); gu_group(1, 1); gu_group(2, 0); gu_group(3, 1); q_group(0, 0); x_group(1); q_group(1, 0)
    def kv_slab(kind, j):
        sid = f'{kind}{j}'
        addr = (0 if kind == 'K' else 65536) + 8192*(j % 8)
        srd_ = S_K if kind == 'K' else S_V
        d = [[I(f's_add_u32 m0, s{S_LDSW2}, {addr}'), I(f's_add_u32 s{S_T0}, s{S_KVO}, {8192*j}'),
              I(f'buffer_load_dwordx4 v{V_KV0}, s[{srd_}:{srd_+3}], s{S_T0} offen lds', tag=('dma', sid))],
             [I(f'buffer_load_dwordx4 v{V_KV1}, s[{srd_}:{srd_+3}], s{S_T0} offen offset:1024 lds', tag=('dma', sid))]]
        slab(sid, addr, 8192, d)
    NB = 16
    for j in range(-1, NB+1):
        if j + 1 < NB: kv_slab('K', j+1)
        if 0 <= j - 1: kv_slab('V', j-1)
        first = len(ops)
        kops = []; vops = []
        if j + 1 < NB:
            Sn = V_S[(j+1) & 1]; kaddr = 8192*((j+1) % 8)
            order = [(kt, ds) for ds in range(4) for kt in range(2)] if j == -1 else [(kt, ds) for kt in range(2) for ds in range(4)]
            for kt, ds in order:
                mf = []
                for tt in range(4):
                    acc = Sn + 16*kt + 4*tt
                    c = '0' if ds == 0 else f'v[{acc}:{acc+3}]'
                    q = V_QP[ds] + 4*tt
                    mf.append(lambda A, acc=acc, q=q, c=c: f'v_mfma_f32_16x16x32_bf16 v[{acc}:{acc+3}], {A}, v[{q}:{q+3}], {c}')
                kops.append(Op([('ds_read_b128', V_K[ds], kaddr + 4096*kt)], mf, f'K{j+1}'))
        if j - 1 >= 0:
            Pp = V_P[(j-1) & 1]; vaddr = 8192*((j-1) % 8)
            for dt in range(8):
                mf = []
                for tt in range(4):
                    acc = A_O + 16*dt + 4*tt
                    c = '0' if j == 1 else f'a[{acc}:{acc+3}]'
                    p = Pp + 4*tt
                    mf.append(lambda A, acc=acc, p=p, c=c: f'v_mfma_f32_16x16x32_bf16 a[{acc}:{acc+3}], {A}, v[{p}:{p+3}], {c}')
                if dt % 2 == 1:
                    tt = dt // 2; acc = A_L + 4*tt; p = Pp + 4*tt
                    c = '0' if j == 1 else f'a[{acc}:{acc+3}]'
                    mf.append(lambda A, acc=acc, p=p, c=c: f'v_mfma_f32_16x16x32_bf16 a[{acc}:{acc+3}], a[{A_ONES}:{A_ONES+3}], v[{p}:{p+3}], {c}')
                vops.append(Op([(tr, V_V[dt], vaddr), (tr, V_V[dt], vaddr + 4096)], mf, f'V{j-1}'))
        seq = []
        if kops and vops:
            for a_, b_ in zip(kops, vops): seq += [a_, b_]
        else: seq = kops + vops
        seq[0].sync = True
        seq[0].syncslabs = ([f'K{j+1}'] if kops else []) + ([f'V{j-1}'] if vops else [])
        ops.extend(seq)
        group_ops[f'A{j}'] = (first, len(ops))
    N = len(ops)
    g0 = []
    for i, o in enumerate(ops):
        buf = ABUF + 4*(i % NBUF)
        A = f'v[{buf}:{buf+3}]'
        g0.append(len(tl.mf))
        for f in o.mfmas: tl.add_mfma(I(f(A)))
        o.buf = buf
    g0.append(len(tl.mf))
    D = 3
    cur_base = {V_GU0: 0, V_GU1: 0, V_X: 0, V_Q0: 0, V_Q1: 0}
    prologue_reads = []
    barrier_gap = {}
    barriers = []
    for i, o in enumerate(ops):
        rl = []
        for k, (mn, areg, off) in enumerate(o.reads):
            n = 2 if 'b64' in mn else 4
            dst = o.buf + (2*k if n == 2 else 0)
            x = I(f'{mn} v[{dst}:{dst+n-1}], v{areg} offset:{off}', tag=('rd', o.slabs[0]))
            slabs[o.slabs[0]]['nreads'] += 1
            rl.append(x)
        o.rd = rl
        pre = []
        if o.sync:
            ss = getattr(o, 'syncslabs', o.slabs)
            wv = WaitVM([])
            wv.slabs = ss
            pre += [wv, I('s_barrier')]
        if o.addr:
            for areg, base in o.addr.items():
                if cur_base[areg] != base:
                    pre.append(I(f'v_add_u32 v{areg}, {(base - cur_base[areg]) & 0xffffffff:#x}, v{areg}'))
                    cur_base[areg] = base
        if i < D:
            prologue_reads.append((pre, rl)); gp = 0
        else:
            gp = g0[i-D] + 1
            for x in pre: tl.put(gp, x)
            tl.put(gp, rl[0])
            if len(rl) > 1: tl.put(gp + 1, rl[1])
        if o.sync:
            for sid in getattr(o, 'syncslabs', o.slabs): barrier_gap[sid] = gp
            barriers.append(gp)
        o.rdgap = gp
    wait_gap = {}
    for i, o in enumerate(ops):
        if i % 2 == 0:
            items = list(o.rd) + (list(ops[i+1].rd) if i + 1 < N else [])
            w = WaitDS(items); w.last = True
            tl.put(g0[i], w)
            wait_gap[i] = g0[i]
            if i + 1 < N: wait_gap[i+1] = g0[i]
    last_op = {}
    for i, o in enumerate(ops): last_op[o.slabs[0]] = i
    def free_gap(sid):
        wg = wait_gap[last_op[sid]]
        for b in barriers:
            if b > wg: return b
        return None
    prologue_dma = []
    ptr = 0
    placed = []
    for sid in dmas:
        sl = slabs[sid]
        lo, hi = sl['addr'], sl['addr'] + sl['size']
        earliest = -1
        for oid in placed:
            o_ = slabs[oid]
            if o_['addr'] < hi and lo < o_['addr'] + o_['size']:
                fg = free_gap(oid); assert fg is not None
                earliest = max(earliest, fg)
        placed.append(sid)
        sl['earliest'] = earliest
        flat = sl['dma']
        sl['loads'] = [x for grp in flat for x in grp if x.kind == 'dma']
        if earliest < 0 and sid in ('GU0_0', 'GU0_1', 'GU0_2'):
            prologue_dma.append(sid); continue
        start = max(earliest + 1, ptr, 1)
        bg = barrier_gap[sid]
        win = max(len(flat)*6, 8)
        end = min(start + win, bg - 1)
        assert start < end, (sid, start, end, bg)
        sl['lead'] = bg - start
        pos = tl.spread(flat, start, end, cap=3.0)
        ptr = max(pos)
    for g in tl.gap:
        for x in g:
            if isinstance(x, WaitVM) and hasattr(x, 'slabs'):
                x.items = [l for sid in x.slabs for l in slabs[sid]['loads']]
    for pre, rl in prologue_reads:
        for x in pre:
            if isinstance(x, WaitVM) and hasattr(x, 'slabs'): x.items = [l for sid in x.slabs for l in slabs[sid]['loads']]
    xl = {}
    pro = setup()
    def xloads(s0, s1):
        r = []
        for s in range(s0, s1):
            r.append(I(f's_add_u32 s{S_T1}, s{S_XN}, {s*4096}'))
            for tt in range(4):
                x = I(f'buffer_load_dwordx4 {xn(s,tt)}, v{V_L16}, s[{S_WS}:{S_WS+3}], s{S_T1} offen offset:{tt*1024}')
                xl.setdefault(s, []).append(x); r.append(x)
        return r
    for k, sid in enumerate(prologue_dma):
        for grp in slabs[sid]['dma']: pro += grp
        pro += xloads(6*k, 6*k+6)
    a0, a1 = group_ops['GU0']
    for i in range(a0, a1):
        if (i - a0) % 4 == 0:
            s = (i - a0)//4
            w = WaitVM(xl[s]); w.last = True
            tl.put(g0[i], w)
    for pre, rl in prologue_reads:
        pro += pre + rl
    def gaps(name, skip_ops=2, tail=0):
        a, b = group_ops[name]
        return g0[a + skip_ops], g0[b] - tail
    def E_gu(j, aset):
        s = []
        k = 0
        for tt in range(4):
            hp = V_HP + 4*(tt & 1)
            for T in range(2):
                g = ACC[aset] + T*16 + 4*tt; u = ACC[aset] + (2+T)*16 + 4*tt
                s += gelu_tile(g, u, hp + 2*T, V_TMP + 4*(k & 1)); k += 1
            s.append([I(f's_add_u32 s{S_T2}, s{S_HO}, {j*4096}'), I(f'buffer_store_dwordx4 v[{hp}:{hp+3}], v{V_L16}, s[{S_WS}:{S_WS+3}], s{S_T2} offen offset:{tt*1024}')])
        return s
    def E_x(aset):
        s = []
        for tt in range(4):
            hp = V_HP + 4*(tt & 1)
            g = ACC[aset] + 4*tt; u = ACC[aset] + 16 + 4*tt
            s += gelu_tile(g, u, hp, V_TMP + 4*(tt & 1))
            s.append(I(f'buffer_store_dwordx2 v[{hp}:{hp+1}], v{V_L16}, s[{S_WS}:{S_WS+3}], s{S_HXO} offen offset:{tt*1024}'))
        return s
    def E_q(u, aset, es=(0, 1)):
        s = []
        for e in es:
            for tt in range(4):
                for T in range(2):
                    acc = ACC[aset] + (2*e+T)*16 + 4*tt
                    for i in range(4): s.append(I(f'v_mul_f32 v{acc+i}, s{S_QS}, v{acc+i}'))
                    q = V_QP[2*u+e] + 4*tt + 2*T
                    s.append(I(f'v_cvt_pk_bf16_f32 v{q}, v{acc}, v{acc+1}'))
                    s.append(I(f'v_cvt_pk_bf16_f32 v{q+1}, v{acc+2}, v{acc+3}'))
        return s
    tl.spread(E_gu(0, 0), *gaps('GU1', 3, 4))
    tl.spread(E_gu(1, 1), *gaps('GU2', 3, 4))
    tl.spread(E_gu(2, 0), *gaps('GU3', 3, 4))
    tl.spread(E_gu(3, 1), *gaps('Q0', 3, 4))
    tl.spread(E_q(0, 0), *gaps('X', 3, 4))
    qa, qb = group_ops['Q1']
    tl.spread(kaddr_setup(), g0[qa+4], g0[qa+12])
    tl.spread(E_x(1), g0[qa+12], g0[qb] - 40)
    aa, ab = group_ops['A-1']
    tl.spread(E_q(1, 0, es=(0,)), g0[qb-1] + 1, g0[aa+4], cap=3.0)
    tl.spread(E_q(1, 0, es=(1,)), g0[aa+4] - 2, g0[aa+6], cap=3.0)
    return tl, ops, slabs, group_ops, g0, pro

def attention_tasks(tl, ops, group_ops, g0):
    a0, b0 = group_ops['A0']
    am, bm = group_ops['A-1']
    tl.spread(vaddr_setup(), g0[bm-1], g0[a0+4], cap=3.0)
    for j in range(0, 16):
        a, b = group_ops[f'A{j}']
        S = V_S[j & 1]; P = V_P[j & 1]
        s = []
        for kt in range(2):
            for tt in range(4):
                r = S + 16*kt + 4*tt
                for i in range(4): s.append(I(f'v_exp_f32 v{r+i}, v{r+i}'))
                s.append(I(f'v_cvt_pk_bf16_f32 v{P + 4*tt + 2*kt}, v{r}, v{r+1}'))
                s.append(I(f'v_cvt_pk_bf16_f32 v{P + 4*tt + 2*kt + 1}, v{r+2}, v{r+3}'))
        lo = g0[a] + (6 if j == 0 else 1)
        tl.spread(s, lo, g0[b] - 1, cap=2.0)

def o_epilogue():
    s = []
    for tt in range(4):
        s.append(I(f'v_accvgpr_read_b32 v{48+tt}, a{A_L+4*tt}'))
    for tt in range(4):
        s.append(I(f'v_rcp_f32 v{48+tt}, v{48+tt}'))
    k = 0
    for u in range(4):
        s.append(I(f's_add_u32 s{S_T2}, s{S_OO}, {u*4096}'))
        for tt in range(4):
            base = 96 + 16*(k & 3); k += 1
            hp = base + 8
            for T in range(2):
                acc = A_O + 16*(2*u+T) + 4*tt
                for i in range(4): s.append(I(f'v_accvgpr_read_b32 v{base+4*T+i}, a{acc+i}'))
            for T in range(2):
                for i in range(4): s.append(I(f'v_mul_f32 v{base+4*T+i}, v{base+4*T+i}, v{48+tt}'))
            for T in range(2):
                s.append(I(f'v_cvt_pk_bf16_f32 v{hp+2*T}, v{base+4*T}, v{base+4*T+1}'))
                s.append(I(f'v_cvt_pk_bf16_f32 v{hp+2*T+1}, v{base+4*T+2}, v{base+4*T+3}'))
            s.append(I(f'buffer_store_dwordx4 v[{hp}:{hp+3}], v{V_L16}, s[{S_WS}:{S_WS+3}], s{S_T2} offen offset:{tt*1024}'))
    return s

def build(stats=False):
    tl, ops, slabs, group_ops, g0, pro = gen()
    attention_tasks(tl, ops, group_ops, g0)
    for g in tl.gap:
        lastw = [x for x in g if getattr(x, 'last', False)]
        if lastw:
            rest = [x for x in g if not getattr(x, 'last', False)]
            g[:] = rest + lastw
    seq = pro + tl.flatten() + o_epilogue() + L(f"""s_waitcnt vmcnt(0)
{NAME}_end:
s_endpgm""")
    r = resolve_waits(seq)
    for s_ in slabs.values(): s_['_seen'] = 0
    r, nn = check(r, slabs=slabs, verbose=stats)
    if stats:
        print('instrs', len(r), 'mfma', len(tl.mf), 'nops', nn)
        for name, (a, b) in group_ops.items():
            ld = sum(tl.load[g0[a]:g0[b]]); n = g0[b] - g0[a]
            print(f'{name:6s} mfma {n:4d} fill {ld:6.1f} per-mfma {ld/n:.2f} max {max(tl.load[g0[a]:g0[b]])}')
        for sid, s_ in slabs.items():
            if 'lead' in s_: print(sid, 'lead', s_['lead'], end='; ')
        print()
    return header(NAME) + emit(r), descriptor(NAME, 512, 256, 96)
if __name__ == '__main__':
    t, d = build(stats=True)
    open('k1.s', 'w').write(t)
```

```python
from common import *
NAME = 'p2_kernel'
S_WS = 8; S_WT = 12
S_W = 28; S_ACT = 29; S_WO = 30; S_LDSW = 31; S_SLAB = 32
S_T0 = 40; S_T1 = 41; S_T2 = 42; S_T3 = 43
V_L16 = 1; V_D = list(range(2, 11)); V_A = 11
ABUF = 16; NBUF = 4
ACC = 64
NBB = 8
SLOT = 36864
class Op: pass

def setup(tag):
    s = L(f"""s_cmp_ge_u32 s2, 256
s_cbranch_scc1 {NAME}_end
s_load_dwordx2 s[48:49], s[0:1], {KA['wo']}
s_load_dwordx2 s[50:51], s[0:1], {KA['wd']}
s_load_dwordx2 s[52:53], s[0:1], {KA['ws']}
v_lshrrev_b32 v1, 6, v0
v_and_b32 v0, 63, v0
v_readfirstlane_b32 s{S_W}, v1
s_and_b32 s20, s2, 7
s_lshr_b32 s21, s2, 3
s_lshr_b32 s22, s21, 2
s_and_b32 s23, s21, 3
s_waitcnt lgkmcnt(0)""")
    s += srd(S_WS, 52, SZ['ws'])
    Y = tag == 'y'
    s += srd(S_WT, 50 if Y else 48, SZ['wd'] if Y else SZ['wo'])
    s += L(f"""s_movk_i32 s25, {144 if Y else 128}
s_mov_b32 s26, {WS_H if Y else WS_O}
s_and_b32 s27, s20, 3
s_mul_i32 s27, s27, {36 if Y else 32}
s_lshl_b32 s{S_T0}, s22, 2
s_add_u32 s{S_T0}, s{S_T0}, s{S_W}
s_mul_i32 s{S_ACT}, s{S_T0}, s25
s_add_u32 s{S_ACT}, s{S_ACT}, s27
s_lshl_b32 s{S_ACT}, s{S_ACT}, 12
s_add_u32 s{S_ACT}, s{S_ACT}, s26
s_add_u32 s{S_WO}, s27, s{S_W}
s_mul_i32 s{S_WO}, s{S_WO}, {32*1152}
s_mul_i32 s{S_T1}, s23, 288
s_add_u32 s{S_WO}, s{S_WO}, s{S_T1}
s_mul_i32 s{S_LDSW}, s{S_W}, 9216
s_lshl_b32 s{S_T1}, s20, 5
s_add_u32 s{S_T1}, s{S_T1}, s21
s_lshl_b32 s{S_T1}, s{S_T1}, 2
s_add_u32 s{S_T1}, s{S_T1}, s{S_W}
s_mul_i32 s{S_SLAB}, s{S_T1}, {18*1024}
s_add_u32 s{S_SLAB}, s{S_SLAB}, {WS_SLAB}
v_lshlrev_b32 v{V_L16}, 4, v0
s_movk_i32 s{S_T1}, 1152
s_mov_b32 s{S_T2}, {(1 << 32)//18 + 1}""")
    for n in range(9):
        s += L(f"""v_add_u32 v20, {64*n}, v0
v_mul_hi_u32 v21, v20, s{S_T2}
v_mul_u32_u24 v22, 18, v21
v_sub_u32 v22, v20, v22
v_mul_lo_u32 v21, v21, s{S_T1}
v_lshl_add_u32 v21, v22, 4, v21
v_subrev_u32 v{V_D[n]}, {1024*(n & 3)}, v21""")
    s += L(f"""v_lshrrev_b32 v20, 4, v0
v_and_b32 v21, 15, v0
v_lshrrev_b32 v22, 2, v21
v_and_b32 v23, 3, v21
v_lshl_add_u32 v20, v20, 2, v22
v_mul_u32_u24 v20, 288, v20
v_lshl_add_u32 v{V_A}, v23, 3, v20""")
    return s

def gen(nslots, tag):
    tl = Timeline(); ops = []; slabs = {}; order = []
    nk = 4*nslots
    tr = 'ds_read_b64_tr_b16'
    for i in range(nslots):
        addr = SLOT*(i % 4); sid = f'W{i}'
        d = []
        for n in range(9):
            grp = []
            if n == 0: grp.append(I(f's_add_u32 s{S_T0}, s{S_WO}, {i*4*32*1152}'))
            if n % 4 == 0: grp.insert(0, I(f's_add_u32 m0, s{S_LDSW}, {addr + 1024*n}'))
            if n in (4, 8): grp.append(I('s_nop 0'))
            grp.append(I(f'buffer_load_dwordx4 v{V_D[n]}, s[{S_WT}:{S_WT+3}], s{S_T0} offen offset:{1024*(n & 3)} lds', tag=('dma', sid)))
            d.append(grp)
        slabs[sid] = dict(addr=addr, size=SLOT, dma=d, nreads=0); order.append(sid)
        for k4 in range(4):
            s = 4*i + k4
            bb = 16*(s % NBB)
            for nt in range(9):
                o = Op()
                off = k4*9216 + nt*32
                o.reads = [(tr, off), (tr, off + 4608)]
                o.slab = sid; o.sync = (k4 == 0 and nt == 0); o.base = addr; o.s = s; o.nt = nt
                acc = ACC + 16*nt
                o.mf = [(acc + 4*tt, bb + 4*tt, s == 0) for tt in range(4)]
                ops.append(o)
    N = len(ops); g0 = []
    for i, o in enumerate(ops):
        o.buf = ABUF + 4*(i % NBUF)
        g0.append(len(tl.mf))
        for acc, b, first in o.mf:
            c = '0' if first else f'v[{acc}:{acc+3}]'
            tl.add_mfma(I(f'v_mfma_f32_16x16x32_bf16 v[{acc}:{acc+3}], v[{o.buf}:{o.buf+3}], a[{b}:{b+3}], {c}'))
    g0.append(len(tl.mf))
    D = 3; cur = 0; pro_reads = []; barrier_gap = {}; barriers = []
    for i, o in enumerate(ops):
        rl = [I(f'{mn} v[{o.buf+2*k}:{o.buf+2*k+1}], v{V_A} offset:{off}', tag=('rd', o.slab)) for k, (mn, off) in enumerate(o.reads)]
        slabs[o.slab]['nreads'] += 2
        o.rd = rl
        pre = []
        if o.sync:
            wv = WaitVM([]); wv.slabs = [o.slab]
            pre += [wv, I('s_barrier')]
            if cur != o.base:
                pre.append(I(f'v_add_u32 v{V_A}, {(o.base - cur) & 0xffffffff:#x}, v{V_A}')); cur = o.base
        if i < D:
            pro_reads.append((pre, rl)); gp = 0
        else:
            gp = g0[i-D] + 1
            for x in pre: tl.put(gp, x)
            tl.put(gp, rl[0]); tl.put(gp+1, rl[1])
        if o.sync: barrier_gap[o.slab] = gp; barriers.append(gp)
    wait_gap = {}
    for i, o in enumerate(ops):
        if i % 2 == 0:
            items = list(o.rd) + (list(ops[i+1].rd) if i+1 < N else [])
            w = WaitDS(items); w.last = True
            tl.put(g0[i], w); wait_gap[i] = g0[i]
            if i+1 < N: wait_gap[i+1] = g0[i]
    last_op = {}
    for i, o in enumerate(ops): last_op[o.slab] = i
    def free_gap(sid):
        wg = wait_gap[last_op[sid]]
        for b in barriers:
            if b > wg: return b
    bl = {}
    def bloads(s):
        r = [I(f's_add_u32 s{S_T1}, s{S_ACT}, {s*4096}')]
        for tt in range(4):
            b = 16*(s % NBB) + 4*tt
            x = I(f'buffer_load_dwordx4 a[{b}:{b+3}], v{V_L16}, s[{S_WS}:{S_WS+3}], s{S_T1} offen offset:{tt*1024}')
            bl.setdefault(s, []).append(x); r.append(x)
        return r
    pro = setup(tag)
    LEAD = NBB - 1
    placed = []; ptr = 1
    for g in slabs['W0']['dma']: pro += g
    for s in range(0, 3): pro += bloads(s)
    for g in slabs['W1']['dma']: pro += g
    for s in range(3, LEAD): pro += bloads(s)
    placed = ['W0', 'W1']
    for sid in placed: slabs[sid]['loads'] = [x for g in slabs[sid]['dma'] for x in g if x.kind == 'dma']
    for s in range(LEAD, nk):
        k = s - LEAD
        a = g0[9*k] + 2; b = g0[9*k + 9] - 1
        r = bloads(s)
        tl.spread([[r[0], r[1]]] + r[2:], a, b, cap=3.0)
    for sid in order[2:]:
        sl = slabs[sid]; lo, hi = sl['addr'], sl['addr'] + sl['size']; earliest = -1
        for oid in placed:
            o_ = slabs[oid]
            if o_['addr'] < hi and lo < o_['addr'] + o_['size']: earliest = max(earliest, free_gap(oid))
        placed.append(sid)
        sl['loads'] = [x for g in sl['dma'] for x in g if x.kind == 'dma']
        start = max(earliest + 1, ptr, 2); bg = barrier_gap[sid]
        end = min(start + 100, bg - 1)
        sl['lead'] = bg - start
        pos = tl.spread(sl['dma'], start, end, cap=3.0); ptr = max(pos)
    for g in tl.gap:
        for x in g:
            if isinstance(x, WaitVM) and hasattr(x, 'slabs'): x.items = [l for sid in x.slabs for l in slabs[sid]['loads']]
    for pre, rl in pro_reads:
        for x in pre:
            if isinstance(x, WaitVM) and hasattr(x, 'slabs'): x.items = [l for sid in x.slabs for l in slabs[sid]['loads']]
    for s in range(nk):
        w = WaitVM(bl[s]); w.last = True
        tl.put(g0[9*s], w)
    for pre, rl in pro_reads: pro += pre + rl
    for g in tl.gap:
        lastw = [x for x in g if getattr(x, 'last', False)]
        if lastw:
            rest = [x for x in g if not getattr(x, 'last', False)]; g[:] = rest + lastw
    ep = []
    k = 0
    for nt in range(9):
        for p in range(2):
            hp = 32 + 4*(k % 8); k += 1
            for t in range(2):
                acc = ACC + 16*nt + 4*(2*p + t)
                ep.append(I(f'v_cvt_pk_bf16_f32 v{hp+2*t}, v{acc}, v{acc+1}'))
                ep.append(I(f'v_cvt_pk_bf16_f32 v{hp+2*t+1}, v{acc+2}, v{acc+3}'))
            ci = 2*nt + p
            if ci % 4 == 0: ep.append(I(f's_add_u32 s{S_T2}, s{S_SLAB}, {ci*1024}'))
            ep.append(I(f'buffer_store_dwordx4 v[{hp}:{hp+3}], v{V_L16}, s[{S_WS}:{S_WS+3}], s{S_T2} offen offset:{(ci % 4)*1024}'))
    return pro, tl, ep, slabs

def build(stats=False):
    txt = header(NAME)
    head = L(f"""s_cmp_ge_u32 s2, 256
s_cbranch_scc1 {NAME}_end
s_and_b32 s3, s2, 7
s_cmp_ge_u32 s3, 4
s_cbranch_scc1 {NAME}_y""")
    txt += emit(head)
    for nslots, tag in ((8, 's'), (9, 'y')):
        pro, tl, ep, slabs = gen(nslots, tag)
        seq = pro[2:] + tl.flatten() + ep + L("s_waitcnt vmcnt(0)\ns_endpgm")
        r = resolve_waits(seq)
        for s_ in slabs.values(): s_['_seen'] = 0
        r, nn = check(r, slabs=slabs, verbose=stats)
        if stats:
            print(tag, 'instrs', len(r), 'mfma', len(tl.mf), 'nops', nn, 'fill/mfma', sum(tl.load)/len(tl.mf), 'leads', [s_.get('lead') for s_ in slabs.values()])
        if tag == 'y': txt += f'{NAME}_y:\n'
        txt += emit(r)
    txt += f'{NAME}_end:\ns_endpgm\n'
    return txt, descriptor(NAME, 512, 256, 96)
if __name__ == '__main__':
    t, d = build(stats=True)
    open('k2.s', 'w').write(t)
```

```python
from common import *
import math
NAME = 'red_kernel'
def gen():
    s = L(f"""s_cmp_ge_u32 s2, 256
s_cbranch_scc1 {NAME}_end
s_load_dwordx2 s[4:5], s[0:1], {KA['x']}
s_load_dwordx2 s[6:7], s[0:1], {KA['out']}
s_load_dwordx2 s[20:21], s[0:1], {KA['ws']}
v_lshrrev_b32 v1, 6, v0
v_and_b32 v0, 63, v0
v_readfirstlane_b32 s3, v1
s_waitcnt lgkmcnt(0)""")
    s += srd(8, 4, SZ['x']) + srd(12, 6, SZ['out']) + srd(16, 20, SZ['ws'])
    s += L(f"""s_and_b32 s22, s2, 7
s_lshr_b32 s23, s2, 3
s_lshr_b32 s24, s22, 1
s_and_b32 s25, s22, 1
s_lshl_b32 s26, s23, 2
s_add_u32 s26, s26, s24
s_mul_i32 s26, s26, {18*1024}
s_lshl_b32 s27, s25, 10
s_add_u32 s26, s26, s27
s_add_u32 s26, s26, {WS_SLAB}
s_lshr_b32 s28, s23, 2
s_lshl_b32 s28, s28, 8
s_lshl_b32 s29, s24, 6
s_add_u32 s28, s28, s29
s_lshl_b32 s29, s25, 5
s_add_u32 s28, s28, s29
s_and_b32 s29, s23, 3
s_mul_i32 s29, s29, 288
v_lshlrev_b32 v1, 4, v0
v_and_b32 v2, 15, v0
v_add_u32 v2, s28, v2
s_movk_i32 s30, 1152
v_mul_lo_u32 v2, v2, s30
v_lshrrev_b32 v3, 4, v0
v_lshl_add_u32 v2, v3, 3, v2
v_add_u32 v2, s29, v2
v_add_u32 v3, {16*1152}, v2
s_mov_b32 s31, s3""")
    body = []
    body += L(f"""{NAME}_loop:
s_lshl_b32 s32, s31, 11
s_add_u32 s32, s32, s26""")
    loads = []
    for sl in range(8):
        body += L(f"s_add_u32 s33, s32, {sl*32*4*18*1024}")
        x = I(f'buffer_load_dwordx4 v[{16+4*sl}:{19+4*sl}], v1, s[16:19], s33 offen'); loads.append(x); body.append(x)
    body += L("s_lshl_b32 s34, s31, 5")
    x0 = I('buffer_load_dwordx2 v[48:49], v2, s[8:11], s34 offen'); x1 = I('buffer_load_dwordx2 v[50:51], v3, s[8:11], s34 offen')
    body += [x0, x1]
    body.append(I('s_waitcnt vmcnt(0)'))
    for br, dst in ((0, 56), (1, 64)):
        for d in range(4):
            for k in range(4):
                src = 16 + 4*(4*br + k) + d
                if k == 0:
                    body += L(f"""v_lshlrev_b32 v{dst+2*d}, 16, v{src}
v_and_b32 v{dst+2*d+1}, 0xffff0000, v{src}""")
                else:
                    body += L(f"""v_lshlrev_b32 v72, 16, v{src}
v_and_b32 v73, 0xffff0000, v{src}
v_add_f32 v{dst+2*d}, v{dst+2*d}, v72
v_add_f32 v{dst+2*d+1}, v{dst+2*d+1}, v73""")
    for i in range(8): body += L(f"v_mul_f32 v{74+i}, {f32bits(-math.log2(math.e))}, v{64+i}")
    for i in range(8): body += L(f"v_exp_f32 v{74+i}, v{74+i}")
    for i in range(8): body += L(f"v_add_f32 v{74+i}, 1.0, v{74+i}")
    for i in range(8): body += L(f"v_rcp_f32 v{74+i}, v{74+i}")
    for i in range(8): body += L(f"v_mul_f32 v{64+i}, v{64+i}, v{56+i}")
    for d in range(4):
        body += L(f"""v_lshlrev_b32 v{84+2*d}, 16, v{48+d}
v_and_b32 v{85+2*d}, 0xffff0000, v{48+d}""")
    for i in range(8): body += L(f"v_fma_f32 v{84+i}, v{64+i}, v{74+i}, v{84+i}")
    for d in range(4): body += L(f"v_cvt_pk_bf16_f32 v{52+d}, v{84+2*d}, v{85+2*d}")
    body += L(f"""buffer_store_dwordx2 v[52:53], v2, s[12:15], s34 offen
buffer_store_dwordx2 v[54:55], v3, s[12:15], s34 offen
s_add_u32 s31, s31, 4
s_cmp_lt_u32 s31, 9
s_cbranch_scc1 {NAME}_loop""")
    s += body
    s += L(f"""s_waitcnt vmcnt(0)
{NAME}_end:
s_endpgm""")
    r = resolve_waits(s)
    r, n = check(r)
    return header(NAME) + emit(r), descriptor(NAME, 96, 96, 48)
if __name__ == '__main__':
    print(gen()[0])
```

```python
import sys, k0, k1, k2, k3
def build(path):
    parts = [k0.gen(), k1.build(), k2.build(), k3.gen()]
    ref = open('recurrent_scan__sliding_block_cached__geglu_ffn__prompt.s.ref').read()
    head = [l for l in ref.split('\n') if l.startswith(';') and '@launch' not in l and 'Override launch' not in l and 'grid=ceil' not in l]
    txt = '\n'.join(head) + '\n'
    txt += '; @launch kernel=ln_kernel grid=(128,1,1) block=(256,1,1) lds=0\n'
    txt += '; @launch kernel=p1_kernel grid=(256,1,1) block=(256,1,1) lds=163840\n'
    txt += '; @launch kernel=p2_kernel grid=(256,1,1) block=(256,1,1) lds=163840\n'
    txt += '; @launch kernel=red_kernel grid=(256,1,1) block=(256,1,1) lds=0\n'
    txt += '.amdgcn_target "amdgcn-amd-amdhsa--gfx950"\n.text\n'
    for code, d in parts: txt += code
    txt += '.section .rodata,"a"\n'
    for code, d in parts: txt += '.p2align 6\n' + d
    open(path, 'w').write(txt)
    print('wrote', path, len(txt), 'bytes')
if __name__ == '__main__':
    build(sys.argv[1] if len(sys.argv) > 1 else 'recurrent_scan__sliding_block_cached__geglu_ffn__prompt.s')
```
